```python
import torch

def _softmax(x, axis=-1):
    return torch.softmax(x, dim=axis)
def _gelu(x):
    return torch.nn.functional.gelu(x, approximate="tanh")
def _silu(x):
    return torch.nn.functional.silu(x)
def _sigmoid(x):
    return torch.sigmoid(x)
def _layernorm(x, axis=-1, eps=1e-5):
    m = x.mean(dim=axis, keepdim=True)
    v = x.var(dim=axis, keepdim=True, unbiased=False)
    return (x - m) / torch.sqrt(v + eps)
def _scatter_add(tgt, idx, src, axis=0):
    return tgt.clone().index_add_(axis, idx, src)
def _segment_sum(src, seg, n):
    out = torch.zeros((n,) + src.shape[1:], dtype=src.dtype)
    return out.index_add_(0, seg, src)
def _pad(x, pw):
    flat = tuple(v for pair in reversed(pw) for v in pair)
    return torch.nn.functional.pad(x, flat)

kernel_name = 'recurrent_scan__ssm_conv_s5__glu_gated_glu__prompt'

def setup_inputs():

    _w = (lambda a: (lambda t: t.to(torch.bfloat16) if t.is_floating_point() else t)(torch.as_tensor(a)))
    def _A_setup():
        B, S, D = 1, 2048, 512
        P = D
        Lambda_re = -0.5 * (lambda _x: torch.exp(torch.as_tensor(_x)))((lambda *s: torch.randn(*s, dtype=torch.bfloat16) * 0.2)(P))
        Lambda_im = (lambda *s: torch.randn(*s, dtype=torch.bfloat16) * 0.4)(P) * 1.0
        B_re = (lambda *s: torch.randn(*s, dtype=torch.bfloat16) * 0.2)(P, D) * (D ** -0.5)
        B_im = (lambda *s: torch.randn(*s, dtype=torch.bfloat16) * 0.2)(P, D) * (D ** -0.5)
        C_re = (lambda *s: torch.randn(*s, dtype=torch.bfloat16) * 0.2)(D, P) * (P ** -0.5)
        C_im = (lambda *s: torch.randn(*s, dtype=torch.bfloat16) * 0.2)(D, P) * (P ** -0.5)
        log_dt = (lambda *s: torch.randn(*s, dtype=torch.bfloat16) * 0.2)(P) * 0.3 - 2.0
        Dskip = (lambda *s: torch.randn(*s, dtype=torch.bfloat16) * 0.05)(D)
        return {
            "x": _w((lambda *s: torch.randn(*s, dtype=torch.bfloat16) * 0.05)(B, S, D)),
            "Lambda_re": _w(Lambda_re),
            "Lambda_im": _w(Lambda_im),
            "B_re": _w(B_re),
            "B_im": _w(B_im),
            "C_re": _w(C_re),
            "C_im": _w(C_im),
            "log_dt": _w(log_dt),
            "Dskip": _w(Dskip),
        }
    _A_in = _A_setup()

    def _B_setup():
        B, S, D, F = 1, 2048, 512, 1792
        return {
            "x": _w((lambda *s: torch.randn(*s, dtype=torch.bfloat16) * 0.05)(B, S, D)),
            "w_gate": _w((lambda *s: torch.randn(*s, dtype=torch.bfloat16) * 0.05)(D, F)),
            "w_up": _w((lambda *s: torch.randn(*s, dtype=torch.bfloat16) * 0.05)(D, F)),
            "w_down": _w((lambda *s: torch.randn(*s, dtype=torch.bfloat16) * 0.05)(F, D)),
        }
    _B_in = _B_setup()

    return {
        "A_x": _A_in["x"],
        "A_Lambda_re": _A_in["Lambda_re"],
        "A_Lambda_im": _A_in["Lambda_im"],
        "A_B_re": _A_in["B_re"],
        "A_B_im": _A_in["B_im"],
        "A_C_re": _A_in["C_re"],
        "A_C_im": _A_in["C_im"],
        "A_log_dt": _A_in["log_dt"],
        "A_Dskip": _A_in["Dskip"],
        "B_x": _B_in["x"],
        "B_w_gate": _B_in["w_gate"],
        "B_w_up": _B_in["w_up"],
        "B_w_down": _B_in["w_down"],
    }

def reference(A_x, A_Lambda_re, A_Lambda_im, A_B_re, A_B_im, A_C_re, A_C_im, A_log_dt, A_Dskip, B_x, B_w_gate, B_w_up, B_w_down):
    def _A_ref(x, Lambda_re, Lambda_im, B_re, B_im, C_re, C_im, log_dt, Dskip):
        Bsz, L, H = x.shape
        Lam = Lambda_re + 1j * Lambda_im
        Bmat = B_re + 1j * B_im
        Cmat = C_re + 1j * C_im
        dt = torch.exp(log_dt)
        Lam_bar = torch.exp(dt * Lam)
        B_bar = ((Lam_bar - 1.0) / Lam)[:, None] * Bmat
        Bu = torch.einsum("bld,pd->blp", x + 0j, B_bar)
        h = torch.zeros_like(Bu[:, 0, :])
        hs = []
        for t in range(L):
            h = Lam_bar[None, :] * h + Bu[:, t, :]
            hs.append(h)
        hseq = torch.stack(hs, 1)
        y = 2.0 * torch.einsum("blp,dp->bld", hseq, Cmat).real + x * Dskip[None, None, :]
        return y

    def _B_ref(x, w_gate, w_up, w_down):
        g = torch.einsum("bsd,df->bsf", x, w_gate)
        u = torch.einsum("bsd,df->bsf", x, w_up)
        h = _sigmoid(g) * u
        return torch.einsum("bsf,fd->bsd", h, w_down)

    x = A_x
    xn = _layernorm(x, axis=-1)
    s = _A_ref(xn, A_Lambda_re, A_Lambda_im, A_B_re, A_B_im, A_C_re, A_C_im, A_log_dt, A_Dskip)
    g = _silu(_B_ref(xn, B_w_gate, B_w_up, B_w_down))
    return x + s * g
```

```python
import sys

XN_OFF = 0
BU_OFF = 2 << 20
HG_OFF = 10 << 20
HS_OFF = 18 << 20
CI_OFF = 22 << 20
WS_SIZE = 24 << 20

class B:
    def __init__(self):
        self.l = []
    def __call__(self, s):
        self.l.append("    " + s)
    def label(self, s):
        self.l.append(s + ":")
    def raw(self, s):
        self.l.append(s)
    def nop(self, n):
        while n > 0:
            k = min(n, 16)
            self("s_nop %d" % (k - 1))
            n -= k
    def srd(self, d, lo, size):
        self("s_mov_b32 s%d, s%d" % (d, lo))
        self("s_mov_b32 s%d, s%d" % (d + 1, lo + 1))
        self("s_mov_b32 s%d, 0x%x" % (d + 2, size))
        self("s_mov_b32 s%d, 0x00020000" % (d + 3))
    def stamp(self):
        import os
        if not os.environ.get("STAMP"): return
        i = getattr(self, "nst", 0)
        self("s_memtime s[98:99]")
        self("s_waitcnt lgkmcnt(0)")
        self("s_mov_b32 s%d, s98" % (getattr(self, "stbase", 70) + i))
        self.nst = i + 1
    def dump_stamps(self, srd, kid):
        import os
        if not os.environ.get("STAMP"): return
        n = getattr(self, "nst", 0)
        self("s_waitcnt vmcnt(0)")
        self.stamp()
        n += 1
        self("s_cmp_lg_u32 s3, 0")
        self("s_cbranch_scc1 skip_dump_%d_%d" % (kid, id(self) % 1000 + len(self.l)))
        lab = "skip_dump_%d_%d" % (kid, id(self) % 1000 + len(self.l) - 1)
        self("s_lshl_b32 s98, s2, 7")
        self("s_add_u32 s98, s98, 0x%x" % ((23 << 20) + kid * 65536))
        self("v_mov_b32 v1, s98")
        for i in range(n):
            self("v_mov_b32 v2, s%d" % (getattr(self, "stbase", 70) + i))
            self("buffer_store_dword v2, v1, s[%d:%d], 0 offen offset:%d" % (srd, srd + 3, 4 * i))
        self.label(lab)
        self.nst = 0
    def text(self):
        return "\n".join(self.l) + "\n"

def vr(a, n=1):
    return "v%d" % a if n == 1 else "v[%d:%d]" % (a, a + n - 1)
def sr(a, n=1):
    return "s%d" % a if n == 1 else "s[%d:%d]" % (a, a + n - 1)

def header(b, name):
    b.raw(".globl %s" % name)
    b.raw(".p2align 8")
    b.raw(".type %s,@function" % name)
    b.label(name)

def descriptor(name, vgpr, sgpr=102):
    acc = (vgpr + 3) // 4 * 4
    return """.amdhsa_kernel %s
  .amdhsa_next_free_vgpr %d
  .amdhsa_next_free_sgpr %d
  .amdhsa_accum_offset %d
  .amdhsa_group_segment_fixed_size 0
  .amdhsa_kernarg_size 128
  .amdhsa_user_sgpr_count 2
  .amdhsa_user_sgpr_kernarg_segment_ptr 1
  .amdhsa_system_sgpr_workgroup_id_x 1
.end_amdhsa_kernel
""" % (name, vgpr, sgpr, acc)

LOG2E = 0x3fb8aa3b
INV2PI = 0x3e22f983

def bf16_round(b, dst, src, tmp=None):
    b("v_cvt_pk_bf16_f32 %s, %s, %s" % (vr(dst), vr(src), vr(src)))
    b("v_lshlrev_b32 %s, 16, %s" % (vr(dst), vr(dst)))

def lam_bar(b, vp2, srdLre, srdLim, srdDt, lr, li, lre, lim, t0, t1, t2):
    b("buffer_load_ushort %s, %s, %s, 0 offen" % (vr(lre), vr(vp2), sr(srdLre, 4)))
    b("buffer_load_ushort %s, %s, %s, 0 offen" % (vr(lim), vr(vp2), sr(srdLim, 4)))
    b("buffer_load_ushort %s, %s, %s, 0 offen" % (vr(t0), vr(vp2), sr(srdDt, 4)))
    b("s_waitcnt vmcnt(0)")
    b("v_lshlrev_b32 %s, 16, %s" % (vr(lre), vr(lre)))
    b("v_lshlrev_b32 %s, 16, %s" % (vr(lim), vr(lim)))
    b("v_lshlrev_b32 %s, 16, %s" % (vr(t0), vr(t0)))
    b("v_mul_f32 %s, 0x%x, %s" % (vr(t0), LOG2E, vr(t0)))
    b("v_exp_f32 %s, %s" % (vr(t0), vr(t0)))
    b("s_nop 0")
    bf16_round(b, t0, t0)
    b("v_mul_f32 %s, %s, %s" % (vr(t1), vr(t0), vr(lre)))
    b("v_mul_f32 %s, %s, %s" % (vr(t2), vr(t0), vr(lim)))
    b("v_mul_f32 %s, 0x%x, %s" % (vr(t1), LOG2E, vr(t1)))
    b("v_exp_f32 %s, %s" % (vr(t1), vr(t1)))
    b("v_mul_f32 %s, 0x%x, %s" % (vr(t2), INV2PI, vr(t2)))
    b("v_fract_f32 %s, %s" % (vr(t2), vr(t2)))
    b("v_cos_f32 %s, %s" % (vr(lr), vr(t2)))
    b("v_sin_f32 %s, %s" % (vr(li), vr(t2)))
    b("s_nop 0")
    b("v_mul_f32 %s, %s, %s" % (vr(lr), vr(lr), vr(t1)))
    b("v_mul_f32 %s, %s, %s" % (vr(li), vr(li), vr(t1)))

def gen_k0():
    b = B()
    name = "k0_kernel"
    header(b, name)
    b.stbase = 87
    b("s_cmp_ge_u32 s2, 256")
    b("s_cbranch_scc1 K0_done")
    b.stamp()
    b("s_load_dwordx16 s[4:19], s[0:1], 0")
    b("s_load_dwordx2 s[20:21], s[0:1], 120")
    b("v_and_b32 v1, 63, v0")
    b("v_lshrrev_b32 v2, 6, v0")
    b("s_nop 0")
    b("v_readfirstlane_b32 s3, v2")
    b("s_lshr_b32 s22, s2, 3")
    b("s_and_b32 s23, s2, 7")
    b("s_waitcnt lgkmcnt(0)")
    SX, SBR, SBI, SWS, SCR, SCI, SLR, SLI, SDT = 24, 28, 32, 36, 40, 44, 48, 52, 56
    b.srd(SX, 4, 2048 * 512 * 2)
    b.srd(SLR, 6, 1024)
    b.srd(SLI, 8, 1024)
    b.srd(SBR, 10, 512 * 512 * 2)
    b.srd(SBI, 12, 512 * 512 * 2)
    b.srd(SCR, 14, 512 * 512 * 2)
    b.srd(SCI, 16, 512 * 512 * 2)
    b.srd(SDT, 18, 1024)
    b.srd(SWS, 20, WS_SIZE)
    b.stamp()
    b("s_lshl_b32 s60, s22, 16")
    b("s_lshl_b32 s61, s3, 13")
    b("s_add_u32 s60, s60, s61")
    b("s_add_u32 s61, s60, 4096")
    b("v_lshlrev_b32 v3, 4, v1")
    XR = 16
    for r in range(8):
        b("buffer_load_dwordx4 %s, v3, %s, s%d offen offset:%d" % (vr(XR + 4 * r, 4), sr(SX, 4), 60 + r // 4, (r % 4) * 1024))
    b("s_lshr_b32 s62, s3, 1")
    b("s_lshl_b32 s62, s62, 4")
    b("s_lshl_b32 s63, s23, 6")
    b("s_add_u32 s62, s62, s63")
    b("v_and_b32 v4, 15, v1")
    b("v_add_u32 v4, s62, v4")
    b("v_lshrrev_b32 v5, 4, v1")
    b("v_lshlrev_b32 v6, 10, v4")
    b("v_lshl_add_u32 v6, v5, 6, v6")
    BRE, BIM = 64, 128
    for kc in range(4):
        for j in range(4):
            b("buffer_load_dwordx4 %s, v6, %s, 0 offen offset:%d" % (vr(BRE + 16 * kc + 4 * j, 4), sr(SBR, 4), kc * 256 + j * 16))
        for j in range(4):
            b("buffer_load_dwordx4 %s, v6, %s, 0 offen offset:%d" % (vr(BIM + 16 * kc + 4 * j, 4), sr(SBI, 4), kc * 256 + j * 16))
    b("v_lshrrev_b32 v7, 8, v0")
    b("s_lshl_b32 s63, s2, 1")
    b("v_add_u32 v7, s63, v7")
    b("v_and_b32 v8, 255, v0")
    b("v_lshlrev_b32 v9, 10, v7")
    b("v_lshl_add_u32 v9, v8, 2, v9")
    b("buffer_load_dword v10, v9, %s, 0 offen" % sr(SCR, 4))
    b("buffer_load_dword v11, v9, %s, 0 offen" % sr(SCI, 4))
    b("v_lshlrev_b32 v9, 1, v9")
    b("v_add_u32 v9, 0x%x, v9" % CI_OFF)
    b("v_lshlrev_b32 v12, 1, v4")
    LR, LI, LRE, LIM = 48, 49, 50, 51
    lam_bar(b, 12, SLR, SLI, SDT, LR, LI, LRE, LIM, 52, 53, 54)
    b.stamp()
    b("v_and_b32 v12, 0xffff, v10")
    b("v_lshl_or_b32 v12, v11, 16, v12")
    b("v_lshrrev_b32 v13, 16, v10")
    b("v_and_b32 v14, 0xffff0000, v11")
    b("v_or_b32 v13, v13, v14")
    b("buffer_store_dwordx2 v[12:13], v9, %s, 0 offen" % sr(SWS, 4))
    b("v_add_f32 v52, -1.0, v%d" % LR)
    b("v_mul_f32 v53, v%d, v%d" % (LRE, LRE))
    b("v_fmac_f32 v53, v%d, v%d" % (LIM, LIM))
    b("v_rcp_f32 v53, v53")
    b("v_mul_f32 v54, v52, v%d" % LRE)
    b("v_fmac_f32 v54, v%d, v%d" % (LI, LIM))
    b("v_mul_f32 v55, v%d, v%d" % (LI, LRE))
    b("v_fma_f32 v55, -v52, v%d, v55" % LIM)
    CR, CIm = 14, 15
    b("v_mul_f32 v%d, v54, v53" % CR)
    b("v_mul_f32 v%d, v55, v53" % CIm)
    XF = 192
    SUM = 48
    MEAN = 56
    for r in range(8):
        for q in range(4):
            b("v_lshlrev_b32 %s, 16, %s" % (vr(XF + 8 * r + 2 * q), vr(XR + 4 * r + q)))
            b("v_and_b32 %s, 0xffff0000, %s" % (vr(XF + 8 * r + 2 * q + 1), vr(XR + 4 * r + q)))
    for r in range(8):
        b("v_add_f32 %s, %s, %s" % (vr(SUM + r), vr(XF + 8 * r), vr(XF + 8 * r + 1)))
    for e in range(2, 8):
        for r in range(8):
            b("v_add_f32 %s, %s, %s" % (vr(SUM + r), vr(SUM + r), vr(XF + 8 * r + e)))
    def dpp_reduce(base):
        for m in ("row_shr:1 row_mask:0xf bank_mask:0xf bound_ctrl:0", "row_shr:2 row_mask:0xf bank_mask:0xf bound_ctrl:0",
                  "row_shr:4 row_mask:0xf bank_mask:0xf bound_ctrl:0", "row_shr:8 row_mask:0xf bank_mask:0xf bound_ctrl:0",
                  "row_bcast:15 row_mask:0xa bank_mask:0xf", "row_bcast:31 row_mask:0xc bank_mask:0xf"):
            for r in range(8):
                b("v_add_f32_dpp %s, %s, %s %s" % (vr(base + r), vr(base + r), vr(base + r), m))
    dpp_reduce(SUM)
    for r in range(8):
        b("v_readlane_b32 s%d, %s, 63" % (64 + r, vr(SUM + r)))
    b("s_mov_b32 s80, 0x3b000000")
    b("s_nop 1")
    for r in range(8):
        b("v_mov_b32 %s, s%d" % (vr(MEAN + r), 64 + r))
    for r in range(8):
        b("v_mul_f32 %s, s80, %s" % (vr(MEAN + r), vr(MEAN + r)))
    T = 4
    TT = 32
    for e in range(8):
        for r in range(8):
            b("v_sub_f32 %s, %s, %s" % (vr(TT + r), vr(XF + 8 * r + e), vr(MEAN + r)))
        for r in range(8):
            if e == 0:
                b("v_mul_f32 %s, %s, %s" % (vr(SUM + r), vr(TT + r), vr(TT + r)))
            else:
                b("v_fmac_f32 %s, %s, %s" % (vr(SUM + r), vr(TT + r), vr(TT + r)))
    dpp_reduce(SUM)
    for r in range(8):
        b("v_readlane_b32 s%d, %s, 63" % (64 + r, vr(SUM + r)))
    b("s_nop 1")
    for r in range(8):
        b("v_mov_b32 %s, s%d" % (vr(SUM + r), 64 + r))
    for r in range(8):
        b("v_mul_f32 %s, s80, %s" % (vr(SUM + r), vr(SUM + r)))
    for r in range(8):
        bf16_round(b, SUM + r, SUM + r)
        bf16_round(b, MEAN + r, MEAN + r)
    b("s_mov_b32 s81, 0x3727c5ac")
    for r in range(8):
        b("v_add_f32 %s, s81, %s" % (vr(SUM + r), vr(SUM + r)))
    for r in range(8):
        bf16_round(b, SUM + r, SUM + r)
    for r in range(8):
        b("v_sqrt_f32 %s, %s" % (vr(SUM + r), vr(SUM + r)))
    for r in range(8):
        bf16_round(b, SUM + r, SUM + r)
    for r in range(8):
        b("v_rcp_f32 %s, %s" % (vr(SUM + r), vr(SUM + r)))
    b("s_lshl_b32 s82, s3, 13")
    b("v_add_u32 v7, s82, v3")
    b("s_and_b32 s83, s3, 1")
    b("s_lshl_b32 s83, s83, 3")
    XO = 16
    for r in range(8):
        for q in range(4):
            a0, a1 = XF + 8 * r + 2 * q, XF + 8 * r + 2 * q + 1
            b("v_sub_f32 %s, %s, %s" % (vr(a0), vr(a0), vr(MEAN + r)))
            b("v_sub_f32 %s, %s, %s" % (vr(a1), vr(a1), vr(MEAN + r)))
            b("v_cvt_pk_bf16_f32 %s, %s, %s" % (vr(a0), vr(a0), vr(a1)))
            b("v_and_b32 %s, 0xffff0000, %s" % (vr(a1), vr(a0)))
            b("v_lshlrev_b32 %s, 16, %s" % (vr(a0), vr(a0)))
            b("v_mul_f32 %s, %s, %s" % (vr(a0), vr(a0), vr(SUM + r)))
            b("v_mul_f32 %s, %s, %s" % (vr(a1), vr(a1), vr(SUM + r)))
            b("v_cvt_pk_bf16_f32 %s, %s, %s" % (vr(XO + 4 * r + q), vr(a0), vr(a1)))
        b("s_add_u32 s84, s83, %d" % (r + 12))
        b("s_and_b32 s84, s84, 15")
        b("s_lshl_b32 s84, s84, 4")
        b("v_xor_b32 v8, s84, v7")
        b("ds_write_b128 v8, %s offset:%d" % (vr(XO + 4 * r, 4), r * 1024))
    b.stamp()
    b("s_cmp_lg_u32 s23, 0")
    b("s_cbranch_scc1 K0_noxn")
    for r in range(8):
        b("buffer_store_dwordx4 %s, v3, %s, s%d offen offset:%d" % (vr(XO + 4 * r, 4), sr(SWS, 4), 60 + r // 4, (r % 4) * 1024))
    b.label("K0_noxn")
    b("v_and_b32 v8, 15, v1")
    b("v_add_u32 v9, 12, v8")
    b("v_and_b32 v9, 15, v9")
    b("v_lshrrev_b32 v10, 4, v1")
    b("v_lshlrev_b32 v10, 2, v10")
    b("v_xor_b32 v9, v9, v10")
    b("v_lshlrev_b32 v9, 4, v9")
    b("v_lshl_add_u32 v9, v8, 10, v9")
    b("s_and_b32 s84, s3, 1")
    b("s_lshl_b32 s84, s84, 15")
    b("v_add_u32 v9, s84, v9")
    AAD = 4
    for j in range(4):
        b("v_xor_b32 %s, %d, v9" % (vr(AAD + j), 16 * j))
    b("s_waitcnt lgkmcnt(0)")
    b("s_barrier")
    b.stamp()
    ACC = 200
    for i in range(16):
        b("v_mov_b32 %s, 0" % vr(ACC + i))
    AF = 216
    steps = [(kc, j) for kc in range(4) for j in range(4)]
    def rd(s, buf):
        kc, j = steps[s]
        for i in range(2):
            b("ds_read_b128 %s, %s offset:%d" % (vr(AF + 8 * buf + 4 * i, 4), vr(AAD + j), i * 16384 + kc * 256))
    rd(0, 0)
    for s in range(16):
        kc, j = steps[s]
        if s + 1 < 16:
            rd(s + 1, (s + 1) & 1)
            b("s_waitcnt lgkmcnt(2)")
        else:
            b("s_waitcnt lgkmcnt(0)")
        buf = s & 1
        for i in range(2):
            b("v_mfma_f32_16x16x32_bf16 %s, %s, %s, %s" % (vr(ACC + 4 * i, 4), vr(AF + 8 * buf + 4 * i, 4), vr(BRE + 16 * kc + 4 * j, 4), vr(ACC + 4 * i, 4)))
            b("v_mfma_f32_16x16x32_bf16 %s, %s, %s, %s" % (vr(ACC + 8 + 4 * i, 4), vr(AF + 8 * buf + 4 * i, 4), vr(BIM + 16 * kc + 4 * j, 4), vr(ACC + 8 + 4 * i, 4)))
    b.stamp()
    b("v_and_b32 v8, 15, v1")
    b("v_add_u32 v8, s62, v8")
    b("v_lshlrev_b32 v8, 3, v8")
    b("v_lshrrev_b32 v9, 4, v1")
    b("v_lshl_add_u32 v8, v9, 14, v8")
    b("s_lshl_b32 s84, s22, 18")
    b("s_and_b32 s85, s3, 1")
    b("s_lshl_b32 s85, s85, 17")
    b("s_add_u32 s84, s84, s85")
    b("s_add_u32 s84, s84, 0x%x" % BU_OFF)
    b("v_add_u32 v8, s84, v8")
    b.nop(8)
    for i in range(2):
        for r in range(4):
            ar, ai = ACC + 4 * i + r, ACC + 8 + 4 * i + r
            o = 232 + 2 * ((4 * i + r) % 8)
            b("v_mul_f32 %s, %s, %s" % (vr(o), vr(CR), vr(ar)))
            b("v_fma_f32 %s, -%s, %s, %s" % (vr(o), vr(CIm), vr(ai), vr(o)))
            b("v_mul_f32 %s, %s, %s" % (vr(o + 1), vr(CR), vr(ai)))
            b("v_fmac_f32 %s, %s, %s" % (vr(o + 1), vr(CIm), vr(ar)))
            b("s_mov_b32 s86, 0x%x" % (i * 65536 + r * 4096))
            b("buffer_store_dwordx2 %s, v8, %s, s86 offen" % (vr(o, 2), sr(SWS, 4)))
    b.dump_stamps(SWS, 0)
    b.label("K0_done")
    b("s_endpgm")
    return b.text(), descriptor(name, 256)

def main():
    parts = []
    descs = []
    launches = []
    import gen_k0 as g0
    t, d, l = g0.gen_k0(); parts.append(t); descs.append(d); launches.append(l)
    try:
        from gen_k1 import gen_k1
        t, d, l = gen_k1(); parts.append(t); descs.append(d); launches.append(l)
        from gen_k2 import gen_k2
        t, d, l = gen_k2(); parts.append(t); descs.append(d); launches.append(l)
    except ImportError:
        pass
    out = "\n".join(launches) + "\n"
    out += '.amdgcn_target "amdgcn-amd-amdhsa--gfx950"\n.text\n'
    out += "\n".join(parts)
    out += '.section .rodata,"a"\n'
    for d in descs:
        out += ".p2align 6\n" + d
    path = sys.argv[1] if len(sys.argv) > 1 else "k.s"
    open(path, "w").write(out)

if __name__ == "__main__":
    main()
```

```python
from gen import *

def bc(reg):
    if reg % 2 == 0:
        return vr(reg, 2), "op_sel:[0,0] op_sel_hi:[1,0]"
    return vr(reg - 1, 2), "op_sel:[0,1] op_sel_hi:[1,1]"

def gen_k0():
    b = B()
    name = "k0_kernel"
    header(b, name)
    b.stbase = 87
    b("s_cmp_ge_u32 s2, 256")
    b("s_cbranch_scc1 K0_done")
    b.stamp()
    b("s_load_dwordx16 s[4:19], s[0:1], 0")
    b("s_load_dwordx2 s[20:21], s[0:1], 120")
    b("v_and_b32 v1, 63, v0")
    b("v_lshrrev_b32 v2, 6, v0")
    b("s_nop 0")
    b("v_readfirstlane_b32 s3, v2")
    b("s_lshr_b32 s22, s2, 2")
    b("s_and_b32 s23, s2, 3")
    b("v_lshrrev_b32 v5, 4, v1")
    b("v_and_b32 v6, 15, v1")
    b("s_lshl_b32 s60, s22, 5")
    b("s_lshl_b32 s61, s3, 2")
    b("s_add_u32 s60, s60, s61")
    b("v_add_u32 v3, s60, v5")
    b("v_lshlrev_b32 v3, 10, v3")
    b("v_lshl_add_u32 v3, v6, 4, v3")
    b("s_lshl_b32 s62, s3, 4")
    b("s_lshl_b32 s63, s23, 7")
    b("s_add_u32 s62, s62, s63")
    b("v_add_u32 v4, s62, v6")
    b("v_lshlrev_b32 v12, 1, v4")
    b("v_and_b32 v7, 7, v1")
    b("v_xor_b32 v7, v7, v5")
    b("v_lshlrev_b32 v7, 4, v7")
    b("v_lshrrev_b32 v8, 3, v1")
    b("v_add_u32 v8, s62, v8")
    b("v_lshl_add_u32 v7, v8, 10, v7")
    b("v_xor_b32 v75, 64, v7")
    b("v_add_u32 v75, 0x2000, v75")
    VB = 7
    VB1 = 75
    b("v_lshrrev_b32 v8, 8, v0")
    b("s_lshl_b32 s64, s2, 1")
    b("v_add_u32 v8, s64, v8")
    b("v_and_b32 v9, 255, v0")
    b("v_lshlrev_b32 v8, 10, v8")
    b("v_lshl_add_u32 v9, v9, 2, v8")
    b("s_lshl_b32 s65, s3, 14")
    b("s_waitcnt lgkmcnt(0)")
    SX, SBR, SBI, SWS, SCR, SCI, SLR, SLI, SDT = 24, 28, 32, 36, 40, 44, 48, 52, 56
    b.srd(SX, 4, 2048 * 512 * 2)
    XR = 16
    for q in range(4):
        b("buffer_load_dwordx4 %s, v3, %s, 0 offen offset:%d" % (vr(XR + 4 * q, 4), sr(SX, 4), q * 256))
    b.srd(SBR, 10, 512 * 512 * 2)
    b.srd(SBI, 12, 512 * 512 * 2)
    BST = 32768
    def issue(kc):
        st = kc % 4
        for n in range(4):
            b("s_add_u32 m0, s65, 0x%x" % (BST + st * 4096 + n * 1024))
            b("s_mov_b32 s66, 0x%x" % (kc * 128))
            b("buffer_load_dwordx4 %s, %s, s66 offen lds" % (vr(VB1 if n & 1 else VB), sr(SBR if n < 2 else SBI, 4)))
    for kc in range(4):
        issue(kc)
    b.srd(SLR, 6, 1024)
    b.srd(SLI, 8, 1024)
    b.srd(SCR, 14, 512 * 512 * 2)
    b.srd(SCI, 16, 512 * 512 * 2)
    b.srd(SDT, 18, 1024)
    b.srd(SWS, 20, WS_SIZE)
    b("buffer_load_dword v10, v9, %s, 0 offen" % sr(SCR, 4))
    b("buffer_load_dword v11, v9, %s, 0 offen" % sr(SCI, 4))
    LRE, LIM, LDT = 72, 73, 74
    b("buffer_load_ushort %s, v12, %s, 0 offen" % (vr(LRE), sr(SLR, 4)))
    b("buffer_load_ushort %s, v12, %s, 0 offen" % (vr(LIM), sr(SLI, 4)))
    b("buffer_load_ushort %s, v12, %s, 0 offen" % (vr(LDT), sr(SDT, 4)))
    b("v_lshlrev_b32 v9, 1, v9")
    b("v_add_u32 v9, 0x%x, v9" % CI_OFF)
    b("v_add_u32 v13, s61, v5")
    b("v_xor_b32 v14, v6, v13")
    b("v_and_b32 v14, 15, v14")
    b("v_lshlrev_b32 v14, 4, v14")
    b("v_lshl_add_u32 v14, v13, 10, v14")
    VLW = 14
    b("v_lshrrev_b32 v13, 4, v1")
    b("v_lshrrev_b32 v15, 1, v6")
    b("v_xor_b32 v15, v15, v13")
    b("v_lshlrev_b32 v15, 4, v15")
    b("v_lshl_add_u32 v15, v6, 7, v15")
    b("s_add_u32 s84, s65, 0x%x" % BST)
    b("v_add_u32 v80, s84, v15")
    b("v_xor_b32 v81, 64, v80")
    BAD = 80
    b("s_mov_b32 s80, 0x3b000000")
    b("s_mov_b32 s81, 0x3727c5ac")
    b("s_waitcnt vmcnt(21)")
    b.stamp()
    XF = 128
    TT = 160
    S1, MEAN, RS = 48, 50, 52
    for q in range(16):
        b("v_lshlrev_b32 %s, 16, %s" % (vr(XF + 2 * q), vr(XR + q)))
        b("v_and_b32 %s, 0xffff0000, %s" % (vr(XF + 2 * q + 1), vr(XR + q)))
    for q in range(4):
        b("v_pk_add_f32 %s, %s, %s" % (vr(TT + 2 * q, 2), vr(XF + 4 * q, 2), vr(XF + 4 * q + 2, 2)))
    for q in range(4):
        b("v_pk_add_f32 %s, %s, %s" % (vr(TT + 2 * q, 2), vr(TT + 2 * q, 2), vr(XF + 16 + 4 * q, 2)))
    for q in range(4):
        b("v_pk_add_f32 %s, %s, %s" % (vr(TT + 2 * q, 2), vr(TT + 2 * q, 2), vr(XF + 16 + 4 * q + 2, 2)))
    b("v_pk_add_f32 %s, %s, %s" % (vr(TT, 2), vr(TT, 2), vr(TT + 2, 2)))
    b("v_pk_add_f32 %s, %s, %s" % (vr(TT + 4, 2), vr(TT + 4, 2), vr(TT + 6, 2)))
    b("v_pk_add_f32 %s, %s, %s" % (vr(TT, 2), vr(TT, 2), vr(TT + 4, 2)))
    b("v_add_f32 %s, %s, %s" % (vr(S1), vr(TT), vr(TT + 1)))
    def allreduce16(r):
        for m in ("quad_perm:[1,0,3,2]", "quad_perm:[2,3,0,1]", "row_half_mirror", "row_mirror"):
            b("s_nop 1")
            b("v_add_f32_dpp %s, %s, %s %s row_mask:0xf bank_mask:0xf" % (vr(r), vr(r), vr(r), m))
    allreduce16(S1)
    b("v_mul_f32 %s, s80, %s" % (vr(MEAN), vr(S1)))
    DV = 176
    for h in range(4):
        for q in range(4):
            i = 4 * h + q
            b("v_pk_add_f32 %s, %s, %s %s neg_lo:[0,1] neg_hi:[0,1]" % (vr(DV + 2 * q, 2), vr(XF + 2 * i, 2), bc(MEAN)[0], bc(MEAN)[1]))
        for q in range(4):
            if h == 0:
                b("v_pk_mul_f32 %s, %s, %s" % (vr(TT + 2 * q, 2), vr(DV + 2 * q, 2), vr(DV + 2 * q, 2)))
            else:
                b("v_pk_fma_f32 %s, %s, %s, %s" % (vr(TT + 2 * q, 2), vr(DV + 2 * q, 2), vr(DV + 2 * q, 2), vr(TT + 2 * q, 2)))
    b("v_pk_add_f32 %s, %s, %s" % (vr(TT, 2), vr(TT, 2), vr(TT + 2, 2)))
    b("v_pk_add_f32 %s, %s, %s" % (vr(TT + 4, 2), vr(TT + 4, 2), vr(TT + 6, 2)))
    b("v_pk_add_f32 %s, %s, %s" % (vr(TT, 2), vr(TT, 2), vr(TT + 4, 2)))
    b("v_add_f32 %s, %s, %s" % (vr(S1), vr(TT), vr(TT + 1)))
    allreduce16(S1)
    b("v_mul_f32 %s, s80, %s" % (vr(RS), vr(S1)))
    BRG = 192
    b("s_waitcnt vmcnt(5)")
    for s_ in range(8):
        for im in range(2):
            b("ds_read_b128 %s, %s offset:%d" % (vr(BRG + 8 * s_ + 4 * im, 4), vr(BAD + (s_ & 1)), (s_ >> 1) * 4096 + im * 2048))
    bf16_round(b, RS, RS)
    bf16_round(b, MEAN, MEAN)
    b("v_add_f32 %s, s81, %s" % (vr(RS), vr(RS)))
    bf16_round(b, RS, RS)
    b("v_sqrt_f32 %s, %s" % (vr(RS), vr(RS)))
    for i in range(16):
        b("v_pk_add_f32 %s, %s, %s %s neg_lo:[0,1] neg_hi:[0,1]" % (vr(XF + 2 * i, 2), vr(XF + 2 * i, 2), bc(MEAN)[0], bc(MEAN)[1]))
        if i == 1:
            bf16_round(b, RS, RS)
        if i == 3:
            b("v_rcp_f32 %s, %s" % (vr(RS), vr(RS)))
    XO = 16
    b("s_waitcnt lgkmcnt(0)")
    for kc in range(4, 8):
        issue(kc)
    for i in range(16):
        b("v_cvt_pk_bf16_f32 %s, %s, %s" % (vr(XF + 2 * i), vr(XF + 2 * i), vr(XF + 2 * i + 1)))
    for i in range(16):
        b("v_and_b32 %s, 0xffff0000, %s" % (vr(XF + 2 * i + 1), vr(XF + 2 * i)))
        b("v_lshlrev_b32 %s, 16, %s" % (vr(XF + 2 * i), vr(XF + 2 * i)))
    for i in range(16):
        b("v_pk_mul_f32 %s, %s, %s %s" % (vr(XF + 2 * i, 2), vr(XF + 2 * i, 2), bc(RS)[0], bc(RS)[1]))
    for q in range(4):
        for i in range(4 * q, 4 * q + 4):
            b("v_cvt_pk_bf16_f32 %s, %s, %s" % (vr(XO + i), vr(XF + 2 * i), vr(XF + 2 * i + 1)))
        b("ds_write_b128 %s, %s offset:%d" % (vr(VLW), vr(XO + 4 * q, 4), q * 256))
    b.stamp()
    b("v_lshrrev_b32 v13, 4, v1")
    b("v_xor_b32 v15, v13, v6")
    b("v_lshlrev_b32 v15, 4, v15")
    b("v_lshl_add_u32 v15, v6, 10, v15")
    AAD = 76
    for x in range(4):
        b("v_xor_b32 %s, %d, v15" % (vr(AAD + x), 64 * x))
    ACCX = 0
    ACC = 96
    for i in range(16):
        b("v_mov_b32 %s, 0" % vr(ACC + i))
    b("s_waitcnt vmcnt(16) lgkmcnt(0)")
    b.stamp()
    b("s_barrier")
    b.stamp()
    FR = 112
    def rd(s, buf):
        kc, j = s >> 1, s & 1
        f = FR + 16 * buf
        for i in range(2):
            b("ds_read_b128 %s, %s offset:%d" % (vr(f + 4 * i, 4), vr(AAD + (kc & 1) * 2 + j), i * 16384 + (kc >> 1) * 256))
        if s >= 8:
            for im in range(2):
                b("ds_read_b128 %s, %s offset:%d" % (vr(f + 8 + 4 * im, 4), vr(BAD + j), (kc % 4) * 4096 + im * 2048))
            return 4
        return 2
    rd(0, 0)
    LR, LI = 64, 65
    CR, CIm = 66, 67
    t0, t1, t2 = 68, 69, 70
    coef_ops = []
    def C(s): coef_ops.append(s)
    C("v_lshlrev_b32 %s, 16, %s" % (vr(LRE), vr(LRE)))
    C("v_lshlrev_b32 %s, 16, %s" % (vr(LIM), vr(LIM)))
    C("v_lshlrev_b32 %s, 16, %s" % (vr(t0), vr(LDT)))
    C("v_mul_f32 %s, 0x%x, %s" % (vr(t0), LOG2E, vr(t0)))
    C("v_exp_f32 %s, %s" % (vr(t0), vr(t0)))
    C("s_nop 0")
    C("v_cvt_pk_bf16_f32 %s, %s, %s" % (vr(t0), vr(t0), vr(t0)))
    C("v_lshlrev_b32 %s, 16, %s" % (vr(t0), vr(t0)))
    C("v_mul_f32 %s, %s, %s" % (vr(t1), vr(t0), vr(LRE)))
    C("v_mul_f32 %s, %s, %s" % (vr(t2), vr(t0), vr(LIM)))
    C("v_mul_f32 %s, 0x%x, %s" % (vr(t1), LOG2E, vr(t1)))
    C("v_exp_f32 %s, %s" % (vr(t1), vr(t1)))
    C("v_mul_f32 %s, 0x%x, %s" % (vr(t2), INV2PI, vr(t2)))
    C("v_fract_f32 %s, %s" % (vr(t2), vr(t2)))
    C("v_cos_f32 %s, %s" % (vr(LR), vr(t2)))
    C("v_sin_f32 %s, %s" % (vr(LI), vr(t2)))
    C("s_nop 0")
    C("v_mul_f32 %s, %s, %s" % (vr(LR), vr(LR), vr(t1)))
    C("v_mul_f32 %s, %s, %s" % (vr(LI), vr(LI), vr(t1)))
    C("v_add_f32 %s, -1.0, %s" % (vr(t0), vr(LR)))
    C("v_mul_f32 %s, %s, %s" % (vr(t1), vr(LRE), vr(LRE)))
    C("v_fmac_f32 %s, %s, %s" % (vr(t1), vr(LIM), vr(LIM)))
    C("v_rcp_f32 %s, %s" % (vr(t1), vr(t1)))
    C("v_mul_f32 %s, %s, %s" % (vr(CR), vr(t0), vr(LRE)))
    C("v_fmac_f32 %s, %s, %s" % (vr(CR), vr(LI), vr(LIM)))
    C("v_mul_f32 %s, %s, %s" % (vr(CIm), vr(LI), vr(LRE)))
    C("v_fma_f32 %s, -%s, %s, %s" % (vr(CIm), vr(t0), vr(LIM), vr(CIm)))
    C("v_mul_f32 %s, %s, %s" % (vr(CR), vr(CR), vr(t1)))
    C("v_mul_f32 %s, %s, %s" % (vr(CIm), vr(CIm), vr(t1)))
    C("v_and_b32 v12, 0xffff, v10")
    C("v_lshl_or_b32 v12, v11, 16, v12")
    C("v_lshrrev_b32 v13, 16, v10")
    C("v_and_b32 v15, 0xffff0000, v11")
    C("v_or_b32 v13, v13, v15")
    C("v_lshlrev_b32 v8, 3, v4")
    C("v_lshl_add_u32 v8, v5, 14, v8")
    C("s_lshl_b32 s84, s22, 17")
    C("s_add_u32 s84, s84, 0x%x" % BU_OFF)
    C("v_add_u32 v8, s84, v8")
    ci = 0
    for s in range(16):
        kc, j = s >> 1, s & 1
        if s + 1 < 16:
            if s + 1 >= 8 and j == 1:
                b("s_waitcnt vmcnt(%d)" % (4 * (7 - (kc + 1))))
            n = rd(s + 1, (s + 1) & 1)
            b("s_waitcnt lgkmcnt(%d)" % n)
        else:
            b("s_waitcnt lgkmcnt(0)")
        f = FR + 16 * (s & 1)
        bre = BRG + 8 * s if s < 8 else f + 8
        bim = BRG + 8 * s + 4 if s < 8 else f + 12
        for i in range(2):
            b("v_mfma_f32_16x16x32_bf16 %s, %s, %s, %s" % (vr(ACC + 4 * i, 4), vr(f + 4 * i, 4), vr(bre, 4), vr(ACC + 4 * i, 4)))
            b("v_mfma_f32_16x16x32_bf16 %s, %s, %s, %s" % (vr(ACC + 8 + 4 * i, 4), vr(f + 4 * i, 4), vr(bim, 4), vr(ACC + 8 + 4 * i, 4)))
        for _ in range(4):
            if ci < len(coef_ops):
                b(coef_ops[ci]); ci += 1
    while ci < len(coef_ops):
        b(coef_ops[ci]); ci += 1
    b.stamp()
    b("buffer_store_dwordx2 v[12:13], v9, %s, 0 offen" % sr(SWS, 4))
    b("s_cmp_lg_u32 s23, 0")
    b("s_cbranch_scc1 K0_noxn")
    for q in range(4):
        b("buffer_store_dwordx4 %s, v3, %s, 0 offen offset:%d" % (vr(XO + 4 * q, 4), sr(SWS, 4), q * 256))
    b.label("K0_noxn")
    b.nop(6)
    for i in range(2):
        for r in range(4):
            ar, ai = ACC + 4 * i + r, ACC + 8 + 4 * i + r
            o = 144 + 2 * (4 * i + r)
            b("v_mul_f32 %s, %s, %s" % (vr(o), vr(CR), vr(ar)))
            b("v_fma_f32 %s, -%s, %s, %s" % (vr(o), vr(CIm), vr(ai), vr(o)))
            b("v_mul_f32 %s, %s, %s" % (vr(o + 1), vr(CR), vr(ai)))
            b("v_fmac_f32 %s, %s, %s" % (vr(o + 1), vr(CIm), vr(ar)))
            b("s_mov_b32 s86, 0x%x" % (i * 65536 + r * 4096))
            b("buffer_store_dwordx2 %s, v8, %s, s86 offen" % (vr(o, 2), sr(SWS, 4)))
    b.dump_stamps(SWS, 0)
    b.label("K0_done")
    b("s_endpgm")
    return b.text(), descriptor(name, 256), "; @launch kernel=k0_kernel grid=(256,1,1) block=(512,1,1) lds=163840"
```

```python
from gen import *

def gen_k1():
    b = B()
    name = "k1_kernel"
    header(b, name)
    b("s_cmp_ge_u32 s2, 256")
    b("s_cbranch_scc1 K1_done")
    b.stamp()
    b("s_load_dwordx16 s[4:19], s[0:1], 0")
    b("s_load_dwordx4 s[20:23], s[0:1], 80")
    b("s_load_dwordx2 s[24:25], s[0:1], 120")
    b("v_and_b32 v1, 63, v0")
    b("v_lshrrev_b32 v2, 6, v0")
    b("s_nop 0")
    b("v_readfirstlane_b32 s3, v2")
    b("s_waitcnt lgkmcnt(0)")
    SWS, SG, SU, SLR, SLI, SDT = 28, 32, 36, 40, 44, 48
    b.srd(SWS, 24, WS_SIZE)
    b.srd(SG, 20, 512 * 1792 * 2)
    b.srd(SU, 22, 512 * 1792 * 2)
    b.srd(SLR, 6, 1024)
    b.srd(SLI, 8, 1024)
    b.srd(SDT, 18, 1024)
    b("s_cmp_ge_u32 s2, 224")
    b("s_cbranch_scc1 K1_scan")
    b("s_and_b32 s52, s2, 7")
    b("s_lshr_b32 s53, s2, 3")
    b("s_mul_i32 s54, s53, 37")
    b("s_lshr_b32 s54, s54, 8")
    b("s_mul_i32 s55, s54, 7")
    b("s_sub_u32 s55, s53, s55")
    b("s_lshr_b32 s56, s52, 1")
    b("s_lshl_b32 s56, s56, 2")
    b("s_add_u32 s56, s56, s54")
    b("s_and_b32 s57, s52, 1")
    b("s_mul_i32 s57, s57, 7")
    b("s_add_u32 s57, s57, s55")
    b("v_and_b32 v3, 7, v1")
    b("v_lshrrev_b32 v4, 4, v1")
    b("v_xor_b32 v3, v3, v4")
    b("s_and_b32 s58, s3, 1")
    b("s_lshl_b32 s58, s58, 2")
    b("v_xor_b32 v3, s58, v3")
    b("v_lshlrev_b32 v3, 4, v3")
    b("v_lshrrev_b32 v4, 3, v1")
    b("v_lshl_add_u32 v3, v4, 10, v3")
    b("s_lshl_b32 s58, s56, 17")
    b("s_lshl_b32 s59, s3, 13")
    b("s_add_u32 s58, s58, s59")
    b("s_add_u32 s58, s58, 0x%x" % XN_OFF)
    b("v_add_u32 v3, s58, v3")
    VA = 3
    b("v_and_b32 v5, 15, v1")
    b("v_lshrrev_b32 v6, 4, v1")
    b("v_lshlrev_b32 v7, 2, v6")
    b("v_xor_b32 v5, v5, v7")
    b("v_lshlrev_b32 v5, 4, v5")
    b("s_mov_b32 s58, 3584")
    b("v_mul_lo_u32 v6, v6, s58")
    b("v_add_u32 v5, v5, v6")
    b("s_lshl_b32 s58, s57, 8")
    b("s_mul_i32 s59, s3, 4*3584")
    b("s_add_u32 s58, s58, s59")
    b("v_add_u32 v5, s58, v5")
    VW = 5
    STAGE = 49152
    NST = 3
    import os
    ROT1 = int(os.environ.get("ROT1", "0"))
    if ROT1 == 0:
        b("s_mov_b32 s62, 0")
    elif ROT1 == 1:
        b("s_lshl_b32 s62, s54, 1")
        b("s_add_u32 s62, s62, s55")
        b("s_and_b32 s62, s62, 7")
    else:
        b("s_add_u32 s62, s54, s55")
        b("s_and_b32 s62, s62, 1")
        b("s_lshl_b32 s62, s62, 1")
    def issue_ops(pos):
        st = pos % NST
        base = st * STAGE
        ops = []
        pre = ["s_lshl_b32 s63, s62, 7", "s_mul_i32 s64, s62, %d" % (64 * 3584), "s_add_u32 s65, s63, 0x10000", "s_add_u32 s66, s64, %d" % (32 * 3584)]
        k = 0
        for (tile, srd, v, s0, s1) in ((0, SWS, VA, 63, 65), (1, SG, VW, 64, 66), (2, SU, VW, 64, 66)):
            for h, so in ((0, s0), (1, s1)):
                g = list(pre) if k == 0 else []
                g.append("s_add_u32 m0, s60, 0x%x" % (base + tile * 16384 + h * 8192))
                g.append("s_nop 0")
                g.append("buffer_load_dwordx4 %s, %s, s%d offen lds" % (vr(v), sr(srd, 4), so))
                if k == 5:
                    g += ["s_add_u32 s62, s62, 1", "s_and_b32 s62, s62, 7"]
                ops.append(g); k += 1
        return ops
    def issue(pos):
        for g in issue_ops(pos):
            for x in g: b(x)
    b("s_lshl_b32 s60, s3, 10")
    b.stamp()
    issue(0)
    issue(1)
    b("v_and_b32 v6, 31, v1")
    b("v_lshrrev_b32 v7, 1, v6")
    b("v_and_b32 v7, 7, v7")
    b("v_lshrrev_b32 v8, 5, v1")
    b("v_xor_b32 v7, v7, v8")
    b("v_lshlrev_b32 v7, 4, v7")
    b("v_lshl_add_u32 v7, v6, 7, v7")
    b("s_and_b32 s58, s3, 1")
    b("s_lshl_b32 s58, s58, 13")
    b("v_add_u32 v7, s58, v7")
    XAD = 16
    for st in range(NST):
        for ks in range(4):
            b("v_xor_b32 %s, %d, v7" % (vr(XAD + 4 * st + ks), 32 * ks))
            if st:
                b("v_add_u32 %s, 0x%x, %s" % (vr(XAD + 4 * st + ks), st * STAGE, vr(XAD + 4 * st + ks)))
    b("v_lshrrev_b32 v8, 4, v1")
    b("v_and_b32 v9, 15, v1")
    b("v_lshrrev_b32 v10, 2, v9")
    b("v_lshrrev_b32 v11, 1, v8")
    b("v_lshl_add_u32 v11, v11, 3, v10")
    b("v_and_b32 v12, 1, v8")
    b("v_lshlrev_b32 v12, 1, v12")
    b("v_bfe_u32 v13, v9, 1, 1")
    b("v_add_u32 v12, v12, v13")
    b("s_lshr_b32 s58, s3, 1")
    b("s_lshl_b32 s58, s58, 2")
    b("v_add_u32 v12, s58, v12")
    b("v_lshlrev_b32 v13, 2, v10")
    b("v_xor_b32 v12, v12, v13")
    b("v_lshlrev_b32 v12, 4, v12")
    b("v_lshl_add_u32 v12, v11, 8, v12")
    b("v_and_b32 v13, 1, v9")
    b("v_lshl_add_u32 v12, v13, 3, v12")
    WAD = 28
    for st in range(NST):
        b("v_add_u32 %s, 0x%x, v12" % (vr(WAD + st), st * STAGE + 16384))
    ACC = 64
    for i in range(64):
        b("v_mov_b32 %s, 0" % vr(ACC + i))
    FR = 32
    def rd(st, ks, buf):
        f = FR + 16 * buf
        b("ds_read_b128 %s, %s offset:0" % (vr(f, 4), vr(XAD + 4 * st + ks)))
        b("ds_read_b128 %s, %s offset:4096" % (vr(f + 4, 4), vr(XAD + 4 * st + ks)))
        for rdi in range(2):
            b("ds_read_b64_tr_b16 %s, %s offset:%d" % (vr(f + 8 + 2 * rdi, 2), vr(WAD + st), ks * 4096 + rdi * 1024))
        for rdi in range(2):
            b("ds_read_b64_tr_b16 %s, %s offset:%d" % (vr(f + 12 + 2 * rdi, 2), vr(WAD + st), 16384 + ks * 4096 + rdi * 1024))
    NKC = 8
    b("s_waitcnt vmcnt(6)")
    b("s_barrier")
    b.stamp()
    issue(2)
    rd(0, 0, 0)
    SPREAD = int(os.environ.get("SPREAD1", "8"))
    pend = []
    left = 0
    for kc in range(NKC):
        st = kc % NST
        for ks in range(4):
            buf = ks & 1
            if ks < 3:
                rd(st, ks + 1, buf ^ 1)
                b("s_waitcnt lgkmcnt(6)")
            elif kc + 1 < NKC:
                assert not pend
                b("s_waitcnt vmcnt(%d) lgkmcnt(0)" % (6 if kc + 2 < NKC else 0))
                b("s_barrier")
                b.stamp()
                rd((kc + 1) % NST, 0, buf ^ 1)
                if kc + 3 < NKC:
                    pend = issue_ops(kc + 3)
                    left = SPREAD
            else:
                b("s_waitcnt lgkmcnt(0)")
            f = FR + 16 * buf
            mf = []
            for tf in range(2):
                mf.append("v_mfma_f32_32x32x16_bf16 %s, %s, %s, %s" % (vr(ACC + 16 * tf, 16), vr(f + 8, 4), vr(f + 4 * tf, 4), vr(ACC + 16 * tf, 16)))
                mf.append("v_mfma_f32_32x32x16_bf16 %s, %s, %s, %s" % (vr(ACC + 32 + 16 * tf, 16), vr(f + 12, 4), vr(f + 4 * tf, 4), vr(ACC + 32 + 16 * tf, 16)))
            for i, m in enumerate(mf):
                b(m)
                if pend:
                    n = (len(pend) + left - 1) // left if (len(pend) * SPREAD) % 1 == 0 else 1
                    want_done = 6 - (left - 1) * 6 // SPREAD
                    while pend and (6 - len(pend)) < want_done:
                        for x in pend.pop(0): b(x)
                    left -= 1
    b.stamp()
    b("v_and_b32 v6, 31, v1")
    b("s_mov_b32 s58, 3584")
    b("v_mul_lo_u32 v6, v6, s58")
    b("v_lshrrev_b32 v7, 5, v1")
    b("v_lshl_add_u32 v6, v7, 3, v6")
    b("s_lshl_b32 s58, s56, 7")
    b("s_and_b32 s59, s3, 1")
    b("s_lshl_b32 s59, s59, 6")
    b("s_add_u32 s58, s58, s59")
    b("s_mul_i32 s58, s58, 3584")
    b("s_lshl_b32 s59, s57, 8")
    b("s_add_u32 s58, s58, s59")
    b("s_lshr_b32 s59, s3, 1")
    b("s_lshl_b32 s59, s59, 6")
    b("s_add_u32 s58, s58, s59")
    b("s_add_u32 s58, s58, 0x%x" % HG_OFF)
    b("v_add_u32 v6, s58, v6")
    b("s_mov_b32 s59, %d" % (32 * 3584))
    b.nop(8)
    T = 128
    b("s_mov_b32 s60, 0x%x" % (LOG2E ^ 0x80000000))
    b("s_mov_b32 s61, 0x%x" % (LOG2E ^ 0x80000000))
    b("v_mov_b32 v30, 1.0")
    b("v_mov_b32 v31, 1.0")
    for tf in range(2):
        for g in range(4):
            o = T + 32 + (tf * 4 + g) * 2
            P = [(ACC + 16 * tf + 4 * g + 2 * h, ACC + 32 + 16 * tf + 4 * g + 2 * h, T + 8 * h) for h in range(2)]
            for (ga, ua, t) in P:
                b("v_cvt_pk_bf16_f32 %s, %s, %s" % (vr(t), vr(ga), vr(ga + 1)))
            for (ga, ua, t) in P:
                b("v_and_b32 %s, 0xffff0000, %s" % (vr(t + 1), vr(t)))
                b("v_lshlrev_b32 %s, 16, %s" % (vr(t), vr(t)))
            for (ga, ua, t) in P:
                b("v_pk_mul_f32 %s, %s, s[60:61]" % (vr(t, 2), vr(t, 2)))
            for (ga, ua, t) in P:
                b("v_exp_f32 %s, %s" % (vr(t), vr(t)))
                b("v_exp_f32 %s, %s" % (vr(t + 1), vr(t + 1)))
            for (ga, ua, t) in P:
                b("v_cvt_pk_bf16_f32 %s, %s, %s" % (vr(t + 2), vr(ua), vr(ua + 1)))
            for (ga, ua, t) in P:
                b("v_pk_add_f32 %s, %s, v[30:31]" % (vr(t, 2), vr(t, 2)))
            for (ga, ua, t) in P:
                b("v_rcp_f32 %s, %s" % (vr(t), vr(t)))
                b("v_rcp_f32 %s, %s" % (vr(t + 1), vr(t + 1)))
            for (ga, ua, t) in P:
                b("v_and_b32 %s, 0xffff0000, %s" % (vr(t + 3), vr(t + 2)))
                b("v_lshlrev_b32 %s, 16, %s" % (vr(t + 2), vr(t + 2)))
            for (ga, ua, t) in P:
                b("v_cvt_pk_bf16_f32 %s, %s, %s" % (vr(t), vr(t), vr(t + 1)))
            for (ga, ua, t) in P:
                b("v_and_b32 %s, 0xffff0000, %s" % (vr(t + 1), vr(t)))
                b("v_lshlrev_b32 %s, 16, %s" % (vr(t), vr(t)))
            for (ga, ua, t) in P:
                b("v_pk_mul_f32 %s, %s, %s" % (vr(t, 2), vr(t, 2), vr(t + 2, 2)))
            for h, (ga, ua, t) in enumerate(P):
                b("v_cvt_pk_bf16_f32 %s, %s, %s" % (vr(o + h), vr(t), vr(t + 1)))
            b("buffer_store_dwordx2 %s, v6, %s, %s offen offset:%d" % (vr(o, 2), sr(SWS, 4), "s59" if tf else "0", g * 16))
    b.dump_stamps(SWS, 1)
    b("s_endpgm")
    b.nst = 1
    b.label("K1_scan")
    b("s_sub_u32 s52, s2, 224")
    b("v_and_b32 v3, 7, v0")
    b("v_lshlrev_b32 v3, 1, v3")
    b("s_lshl_b32 s53, s52, 4")
    b("v_add_u32 v3, s53, v3")
    b("v_lshrrev_b32 v4, 3, v0")
    b("v_lshlrev_b32 v5, 3, v3")
    b("v_lshl_add_u32 v5, v4, 17, v5")
    b("v_add_u32 v5, 0x%x, v5" % BU_OFF)
    b("v_lshlrev_b32 v6, 1, v3")
    b("buffer_load_dword v16, v6, %s, 0 offen" % sr(SLR, 4))
    b("buffer_load_dword v17, v6, %s, 0 offen" % sr(SLI, 4))
    b("buffer_load_dword v18, v6, %s, 0 offen" % sr(SDT, 4))
    D = 64
    b("s_mov_b32 s54, 0")
    for s_ in range(32):
        b("buffer_load_dwordx4 %s, v5, %s, s54 offen" % (vr(D + 4 * s_, 4), sr(SWS, 4)))
        b("s_add_u32 s54, s54, 4096")
    b("s_waitcnt vmcnt(32)")
    LRR = (20, 22); LIN = (24, 26)
    for c in range(2):
        lre, lim, t0, t1, t2 = 28, 29, 30, 31, 32
        if c == 0:
            b("v_lshlrev_b32 v28, 16, v16"); b("v_lshlrev_b32 v29, 16, v17"); b("v_lshlrev_b32 v30, 16, v18")
        else:
            b("v_and_b32 v28, 0xffff0000, v16"); b("v_and_b32 v29, 0xffff0000, v17"); b("v_and_b32 v30, 0xffff0000, v18")
        b("v_mul_f32 v30, 0x%x, v30" % LOG2E)
        b("v_exp_f32 v30, v30")
        b("s_nop 0")
        bf16_round(b, 30, 30)
        b("v_mul_f32 v31, v30, v28")
        b("v_mul_f32 v32, v30, v29")
        b("v_mul_f32 v31, 0x%x, v31" % LOG2E)
        b("v_exp_f32 v31, v31")
        b("v_mul_f32 v32, 0x%x, v32" % INV2PI)
        b("v_fract_f32 v32, v32")
        b("v_cos_f32 v33, v32")
        b("v_sin_f32 v34, v32")
        b("s_nop 0")
        b("v_mul_f32 %s, v33, v31" % vr(LRR[c]))
        b("v_mul_f32 %s, v34, v31" % vr(LIN[c] + 1))
        b("v_mov_b32 %s, %s" % (vr(LRR[c] + 1), vr(LRR[c])))
        b("v_sub_f32 %s, 0, %s" % (vr(LIN[c]), vr(LIN[c] + 1)))
    SWAP = "op_sel:[0,1,0] op_sel_hi:[1,0,1]"
    def cmul_add(dst, lrr, lin, h, u):
        b("v_pk_fma_f32 %s, %s, %s, %s" % (vr(dst, 2), vr(lrr, 2), vr(h, 2), vr(u, 2)))
        b("v_pk_fma_f32 %s, %s, %s, %s %s" % (vr(dst, 2), vr(lin, 2), vr(h, 2), vr(dst, 2), SWAP))
    def cmul(dst, lrr, lin, h):
        b("v_pk_mul_f32 %s, %s, %s" % (vr(dst, 2), vr(lrr, 2), vr(h, 2)))
        b("v_pk_fma_f32 %s, %s, %s, %s %s" % (vr(dst, 2), vr(lin, 2), vr(h, 2), vr(dst, 2), SWAP))
    b.stamp()
    for s_ in range(1, 32):
        if s_ % 4 == 1:
            b("s_waitcnt vmcnt(%d)" % max(0, 32 - (s_ + 3) - 1))
        for c in range(2):
            cmul_add(D + 4 * s_ + 2 * c, LRR[c], LIN[c], D + 4 * (s_ - 1) + 2 * c, D + 4 * s_ + 2 * c)
    MRR = (36, 38); MIN = (40, 42); MV = (44, 46); TMP = (48, 50)
    def set_mult(c):
        b("v_mov_b32 %s, %s" % (vr(MRR[c]), vr(MV[c])))
        b("v_mov_b32 %s, %s" % (vr(MRR[c] + 1), vr(MV[c])))
        b("v_mov_b32 %s, %s" % (vr(MIN[c] + 1), vr(MV[c] + 1)))
        b("v_sub_f32 %s, 0, %s" % (vr(MIN[c]), vr(MV[c] + 1)))
    def square(c):
        cmul(TMP[c], MRR[c], MIN[c], MV[c])
        b("v_mov_b32 %s, %s" % (vr(MV[c]), vr(TMP[c])))
        b("v_mov_b32 %s, %s" % (vr(MV[c] + 1), vr(TMP[c] + 1)))
        set_mult(c)
    for c in range(2):
        b("v_mov_b32 %s, %s" % (vr(MV[c]), vr(LRR[c])))
        b("v_mov_b32 %s, %s" % (vr(MV[c] + 1), vr(LIN[c] + 1)))
        set_mult(c)
        for _ in range(5):
            square(c)
    S = 52
    R = 56
    for i in range(4):
        b("v_mov_b32 %s, %s" % (vr(S + i), vr(D + 124 + i)))
    b("v_lshlrev_b32 v6, 4, v0")
    for rnd, d in enumerate((1, 2, 4, 8, 16, 32, 1)):
        last = rnd == 6
        bufo = (rnd & 1) * 8192
        b("ds_write_b128 v6, %s offset:%d" % (vr(S, 4), bufo))
        b("v_subrev_u32 v7, %d, v6" % (d * 128))
        b("v_cmp_le_u32 vcc, %d, v4" % d)
        b("v_max_i32 v7, 0, v7")
        b("s_waitcnt lgkmcnt(0)")
        b("s_barrier")
        b("ds_read_b128 %s, v7 offset:%d" % (vr(R, 4), bufo))
        b("s_waitcnt lgkmcnt(0)")
        for i in range(4):
            b("v_cndmask_b32 %s, 0, %s, vcc" % (vr(R + i), vr(R + i)))
        if not last:
            for c in range(2):
                cmul_add(S + 2 * c, MRR[c], MIN[c], R + 2 * c, S + 2 * c)
            if rnd < 5:
                for c in range(2):
                    square(c)
    b.stamp()
    b("v_lshlrev_b32 v5, 2, v3")
    b("v_lshl_add_u32 v5, v4, 16, v5")
    b("v_add_u32 v5, 0x%x, v5" % HS_OFF)
    b("s_mov_b32 s54, 0")
    CC = [(R, TMP[0]), (R + 2, TMP[1])]
    cur = [R, R + 2]; oth = [48, 50]
    for s_ in range(32):
        for c in range(2):
            cmul(oth[c], LRR[c], LIN[c], cur[c])
            cur[c], oth[c] = oth[c], cur[c]
        for c in range(2):
            h = D + 4 * s_ + 2 * c
            b("v_pk_add_f32 %s, %s, %s" % (vr(h, 2), vr(h, 2), vr(cur[c], 2)))
        for c in range(2):
            h = D + 4 * s_ + 2 * c
            b("v_cvt_pk_bf16_f32 %s, %s, -%s" % (vr(D + 4 * s_ + c), vr(h), vr(h + 1)))
        b("buffer_store_dwordx2 %s, v5, %s, s54 offen" % (vr(D + 4 * s_, 2), sr(SWS, 4)))
        b("s_add_u32 s54, s54, 2048")
    b.dump_stamps(SWS, 1)
    b.label("K1_done")
    b("s_endpgm")
    return b.text(), descriptor(name, 256), "; @launch kernel=k1_kernel grid=(256,1,1) block=(512,1,1) lds=%d" % (NST * STAGE)
```

```python
from gen import *

def gen_k2():
    b = B()
    name = "k2_kernel"
    header(b, name)
    b("s_cmp_ge_u32 s2, 256")
    b("s_cbranch_scc1 K2_done")
    b.stamp()
    b("s_load_dwordx2 s[4:5], s[0:1], 0")
    b("s_load_dwordx2 s[6:7], s[0:1], 64")
    b("s_load_dwordx4 s[8:11], s[0:1], 96")
    b("s_load_dwordx2 s[12:13], s[0:1], 120")
    b("v_and_b32 v1, 63, v0")
    b("v_lshrrev_b32 v2, 6, v0")
    b("s_nop 0")
    b("v_readfirstlane_b32 s3, v2")
    b("s_waitcnt lgkmcnt(0)")
    SWS, SWD, SX, SD, SO = 16, 20, 24, 28, 32
    b.srd(SWS, 12, WS_SIZE)
    b.srd(SWD, 8, 1792 * 512 * 2)
    b.srd(SX, 4, 2048 * 512 * 2)
    b.srd(SD, 6, 1024)
    b.srd(SO, 10, 2048 * 512 * 4)
    b("s_and_b32 s36, s2, 7")
    b("s_lshr_b32 s37, s2, 3")
    b("s_lshr_b32 s38, s37, 3")
    b("s_lshl_b32 s36, s36, 2")
    b("s_add_u32 s36, s36, s38")
    b("s_and_b32 s37, s37, 7")
    b("v_lshrrev_b32 v3, 4, v1")
    b("s_lshl_b32 s39, s3, 2")
    b("v_add_u32 v3, s39, v3")
    b("v_and_b32 v4, 15, v1")
    b("v_xor_b32 v4, v4, v3")
    b("v_lshlrev_b32 v4, 4, v4")
    b("s_lshl_b32 s40, s36, 6")
    b("v_add_u32 v5, s40, v3")
    b("s_mov_b32 s41, 3584")
    b("v_mul_lo_u32 v6, v5, s41")
    b("v_add_u32 v6, v6, v4")
    b("v_add_u32 v6, 0x%x, v6" % HG_OFF)
    VHG = 6
    b("v_lshlrev_b32 v7, 11, v5")
    b("v_add_u32 v7, v7, v4")
    b("v_add_u32 v7, 0x%x, v7" % HS_OFF)
    VHS = 7
    b("s_lshl_b32 s40, s37, 6")
    b("v_add_u32 v5, s40, v3")
    b("v_lshlrev_b32 v8, 11, v5")
    b("v_add_u32 v8, v8, v4")
    b("v_add_u32 v8, 0x%x, v8" % CI_OFF)
    VCI = 8
    b("v_and_b32 v9, 7, v1")
    b("v_bfe_u32 v10, v1, 4, 1")
    b("v_lshlrev_b32 v10, 2, v10")
    b("v_xor_b32 v9, v9, v10")
    b("v_lshlrev_b32 v9, 4, v9")
    b("v_lshrrev_b32 v10, 3, v1")
    b("s_lshl_b32 s40, s3, 3")
    b("v_add_u32 v10, s40, v10")
    b("v_lshl_add_u32 v9, v10, 10, v9")
    b("s_lshl_b32 s40, s37, 7")
    b("v_add_u32 v9, s40, v9")
    VWD = 9
    STAGE = 32768
    NST = 4
    NCH = 22
    b("s_lshl_b32 s60, s3, 10")
    b("s_mul_i32 s62, s38, 7")
    b("s_lshr_b32 s62, s62, 1")
    b("s_mul_i32 s63, s37, 7")
    b("s_lshr_b32 s63, s63, 2")
    b("s_add_u32 s62, s62, s63")
    b("s_sub_u32 s63, s62, 14")
    b("s_cmp_ge_u32 s62, 14")
    b("s_cselect_b32 s62, s63, s62")
    b("s_lshl_b32 s63, s38, 1")
    b("s_add_u32 s63, s63, s37")
    b("s_and_b32 s63, s63, 7")
    import os
    if int(os.environ.get("ROT2", "0")) == 0:
        b("s_mov_b32 s62, 0")
        b("s_mov_b32 s63, 0")
    b("v_and_b32 v22, 31, v1")
    b("s_lshl_b32 s40, s36, 6")
    b("s_and_b32 s41, s3, 1")
    b("s_lshl_b32 s41, s41, 5")
    b("s_add_u32 s40, s40, s41")
    b("v_add_u32 v22, s40, v22")
    b("v_lshrrev_b32 v23, 5, v1")
    b("v_lshlrev_b32 v23, 2, v23")
    b("s_lshl_b32 s40, s37, 6")
    b("s_lshr_b32 s41, s3, 1")
    b("s_lshl_b32 s41, s41, 5")
    b("s_add_u32 s40, s40, s41")
    b("v_add_u32 v23, s40, v23")
    b("v_lshlrev_b32 v24, 1, v23")
    b("v_lshl_add_u32 v25, v22, 10, v24")
    b("v_lshlrev_b32 v26, 1, v25")
    XL, XNL, DL = 96, 104, 112
    vq = []
    for g in range(4):
        b("buffer_load_dwordx2 %s, v24, %s, 0 offen offset:%d" % (vr(DL + 2 * g, 2), sr(SD, 4), g * 16))
        vq.append("D")
    b("v_lshrrev_b32 v27, 3, v1")
    b("v_and_b32 v28, 7, v1")
    b("v_xor_b32 v28, v28, v27")
    b("v_lshlrev_b32 v28, 4, v28")
    b("s_lshl_b32 s40, s36, 6")
    b("s_lshl_b32 s41, s3, 3")
    b("s_add_u32 s40, s40, s41")
    b("v_add_u32 v27, s40, v27")
    b("v_lshl_add_u32 v27, v27, 10, v28")
    b("s_lshl_b32 s40, s37, 7")
    b("v_add_u32 v27, s40, v27")
    XT = 131072
    def issue_xt():
        for (srd, off) in ((SX, 0), (SWS, 8192)):
            for h in range(2):
                b("s_add_u32 m0, s60, 0x%x" % (XT + off + h * 4096))
                b("s_mov_b32 s61, 0x%x" % (h * 32 * 1024))
                b("buffer_load_dwordx4 v27, %s, s61 offen lds" % sr(srd, 4))
                vq.append("XT")
    def vm_wait(tag, extra=""):
        idx = max(i for i, t in enumerate(vq) if t == tag)
        n = len(vq) - 1 - idx
        b("s_waitcnt vmcnt(%d)%s" % (n, extra))
        del vq[:idx + 1]
    def emit_group(g, tag):
        for x in g:
            b(x)
            if x.startswith("buffer_load"):
                vq.append(tag)
    def issue_ops(c):
        st = c % NST
        base = st * STAGE
        ops = []
        for n in range(4):
            g = []
            if n == 0:
                if c < 14:
                    g += ["s_lshl_b32 s64, s62, 8", "s_lshl_b32 s65, s62, 17"]
                else:
                    g += ["s_lshl_b32 s64, s63, 8"]
            g.append("s_add_u32 m0, s60, 0x%x" % (base + n * 4096))
            if c < 14:
                g.append("s_add_u32 s61, s64, 0x%x" % (n * 16 * 3584))
                g.append("buffer_load_dwordx4 %s, %s, s61 offen lds" % (vr(VHG), sr(SWS, 4)))
            else:
                g.append("s_add_u32 s61, s64, 0x%x" % (n * 16 * 2048))
                g.append("buffer_load_dwordx4 %s, %s, s61 offen lds" % (vr(VHS), sr(SWS, 4)))
            ops.append(g)
        for n in range(4):
            g = ["s_add_u32 m0, s60, 0x%x" % (base + 16384 + n * 4096)]
            if c < 14:
                g.append("s_add_u32 s61, s65, 0x%x" % (n * 32 * 1024))
                g.append("buffer_load_dwordx4 %s, %s, s61 offen lds" % (vr(VWD), sr(SWD, 4)))
                if n == 3:
                    g += ["s_add_u32 s62, s62, 1", "s_cmp_eq_u32 s62, 14", "s_cselect_b32 s62, 0, s62"]
            else:
                g.append("s_add_u32 s61, s64, 0x%x" % (n * 16 * 2048))
                g.append("buffer_load_dwordx4 %s, %s, s61 offen lds" % (vr(VCI), sr(SWS, 4)))
                if n == 3:
                    g += ["s_add_u32 s63, s63, 1", "s_and_b32 s63, s63, 7"]
            ops.append(g)
        return ops
    def issue(c):
        for g in issue_ops(c):
            emit_group(g, c)
    b.stamp()
    issue(0); issue(1); issue(2); issue(3)
    issue_xt()
    b("v_and_b32 v10, 31, v1")
    b("v_and_b32 v11, 15, v1")
    b("v_lshrrev_b32 v12, 5, v1")
    b("v_xor_b32 v11, v11, v12")
    b("v_lshlrev_b32 v11, 4, v11")
    b("v_lshl_add_u32 v11, v10, 8, v11")
    b("s_and_b32 s40, s3, 1")
    b("s_lshl_b32 s40, s40, 13")
    b("v_add_u32 v12, s40, v11")
    b("v_add_u32 v13, 0x10000, v12")
    b("s_lshr_b32 s40, s3, 1")
    b("s_lshl_b32 s40, s40, 13")
    b("v_add_u32 v14, s40, v11")
    b("v_add_u32 v14, 16384, v14")
    b("v_add_u32 v15, 0x10000, v14")
    AB = (12, 13); CB = (14, 15)
    b("v_lshrrev_b32 v16, 4, v1")
    b("v_and_b32 v17, 15, v1")
    b("v_lshrrev_b32 v18, 2, v17")
    b("v_lshrrev_b32 v19, 1, v16")
    b("v_lshl_add_u32 v19, v19, 3, v18")
    b("v_and_b32 v20, 1, v16")
    b("v_lshlrev_b32 v20, 1, v20")
    b("v_bfe_u32 v21, v17, 1, 1")
    b("v_add_u32 v20, v20, v21")
    b("s_lshr_b32 s40, s3, 1")
    b("s_lshl_b32 s40, s40, 2")
    b("v_add_u32 v20, s40, v20")
    b("v_bfe_u32 v21, v17, 3, 1")
    b("v_lshlrev_b32 v21, 2, v21")
    b("v_xor_b32 v20, v20, v21")
    b("v_lshlrev_b32 v20, 4, v20")
    b("v_lshl_add_u32 v20, v19, 7, v20")
    b("v_and_b32 v21, 1, v17")
    b("v_lshl_add_u32 v20, v21, 3, v20")
    b("v_add_u32 v16, 16384, v20")
    b("v_add_u32 v17, 0x10000, v16")
    WB = (16, 17)
    ACC = 64
    for i in range(32):
        b("v_mov_b32 %s, 0" % vr(ACC + i))
    FR = 32
    TA = 48
    def rd(c, ks, buf):
        st = c % NST
        f = FR + 8 * buf
        so = (st & 1) * STAGE
        ta = TA + 2 * buf
        if ks == 0:
            b("ds_read_b128 %s, %s offset:%d" % (vr(f, 4), vr(AB[st >> 1]), so))
        else:
            b("v_xor_b32 %s, %d, %s" % (vr(ta), 32 * ks, vr(AB[st >> 1])))
            b("ds_read_b128 %s, %s offset:%d" % (vr(f, 4), vr(ta), so))
        if c < 14:
            for rdi in range(2):
                b("ds_read_b64_tr_b16 %s, %s offset:%d" % (vr(f + 4 + 2 * rdi, 2), vr(WB[st >> 1]), so + ks * 2048 + rdi * 512))
            return 3
        else:
            if ks == 0:
                b("ds_read_b128 %s, %s offset:%d" % (vr(f + 4, 4), vr(CB[st >> 1]), so))
            else:
                b("v_xor_b32 %s, %d, %s" % (vr(ta + 1), 32 * ks, vr(CB[st >> 1])))
                b("ds_read_b128 %s, %s offset:%d" % (vr(f + 4, 4), vr(ta + 1), so))
            return 2
    vm_wait(0)
    b("s_barrier")
    b.stamp()
    rd(0, 0, 0)
    pend = []
    pendc = None
    for c in range(NCH):
        acc = ACC if c < 14 else ACC + 16
        for ks in range(8):
            buf = ks & 1
            if ks + 1 < 8:
                n = rd(c, ks + 1, buf ^ 1)
                b("s_waitcnt lgkmcnt(%d)" % n)
            elif c + 1 < NCH:
                assert not pend
                vm_wait(c + 1, " lgkmcnt(0)")
                b("s_barrier")
                b.stamp()
                rd(c + 1, 0, buf ^ 1)
                if c + 4 < NCH:
                    pend = issue_ops(c + 4); pendc = c + 4
            else:
                b("s_waitcnt lgkmcnt(0)")
            f = FR + 8 * buf
            b("v_mfma_f32_32x32x16_bf16 %s, %s, %s, %s" % (vr(acc, 16), vr(f + 4, 4), vr(f, 4), vr(acc, 16)))
            for _ in range(int(os.environ.get("SPREAD2", "1"))):
                if pend:
                    emit_group(pend.pop(0), pendc)
    b.stamp()
    b("v_and_b32 v3, 31, v1")
    b("s_and_b32 s40, s3, 1")
    b("s_lshl_b32 s40, s40, 5")
    b("v_add_u32 v3, s40, v3")
    b("v_and_b32 v4, 7, v3")
    b("s_lshr_b32 s40, s3, 1")
    b("s_lshl_b32 s40, s40, 2")
    b("v_xor_b32 v4, s40, v4")
    b("v_lshlrev_b32 v4, 4, v4")
    b("v_lshl_add_u32 v4, v3, 7, v4")
    b("v_lshrrev_b32 v5, 5, v1")
    b("v_lshl_add_u32 v4, v5, 3, v4")
    b("v_add_u32 v4, 0x%x, v4" % XT)
    for g in range(4):
        b("v_xor_b32 v5, %d, v4" % (16 * g))
        b("ds_read_b64 %s, v5" % vr(XL + 2 * g, 2))
        b("ds_read_b64 %s, v5 offset:8192" % vr(XNL + 2 * g, 2))
    b("s_waitcnt lgkmcnt(0)")
    T = 120
    for g in range(4):
        o = 140 + 4 * g
        for r in range(4):
            da, ya = ACC + 4 * g + r, ACC + 16 + 4 * g + r
            t = T + 4 * r
            src = 2 * g + (r >> 1)
            def unpack(dst, reg):
                if r & 1:
                    b("v_and_b32 %s, 0xffff0000, %s" % (vr(dst), vr(reg)))
                else:
                    b("v_lshlrev_b32 %s, 16, %s" % (vr(dst), vr(reg)))
            bf16_round(b, t, da)
            b("v_mul_f32 %s, 0x%x, %s" % (vr(t + 1), LOG2E ^ 0x80000000, vr(t)))
            b("v_exp_f32 %s, %s" % (vr(t + 1), vr(t + 1)))
            unpack(t + 2, XNL + src)
            unpack(t + 3, DL + src)
            b("v_add_f32 %s, 1.0, %s" % (vr(t + 1), vr(t + 1)))
            b("v_rcp_f32 %s, %s" % (vr(t + 1), vr(t + 1)))
            b("v_mul_f32 %s, %s, %s" % (vr(t + 2), vr(t + 2), vr(t + 3)))
            bf16_round(b, t + 2, t + 2)
            b("v_mul_f32 %s, %s, %s" % (vr(t), vr(t), vr(t + 1)))
            bf16_round(b, t, t)
            b("v_fma_f32 %s, 2.0, %s, %s" % (vr(t + 2), vr(ya), vr(t + 2)))
            unpack(t + 3, XL + src)
            b("v_mul_f32 %s, %s, %s" % (vr(t + 2), vr(t + 2), vr(t)))
            b("v_add_f32 %s, %s, %s" % (vr(o + r), vr(t + 3), vr(t + 2)))
        b("buffer_store_dwordx4 %s, v26, %s, 0 offen offset:%d" % (vr(o, 4), sr(SO, 4), g * 32))
    b.dump_stamps(SWS, 2)
    b.label("K2_done")
    b("s_endpgm")
    return b.text(), descriptor(name, 160), "; @launch kernel=k2_kernel grid=(256,1,1) block=(256,1,1) lds=%d" % (NST * STAGE + 16384)
```

```python
from gen import *
def mk(name, body, vg=128):
    b = B(); header(b, name)
    for x in body: b(x)
    b("s_endpgm")
    return b.text(), descriptor(name, vg)
ks = []
ks.append(("k0e_kernel", [], 256, "grid=(256,1,1) block=(512,1,1) lds=163840"))
ks.append(("k1e_kernel", [], 32, "grid=(256,1,1) block=(256,1,1) lds=0"))
ks.append(("k2e_kernel", [], 256, "grid=(256,1,1) block=(512,1,1) lds=0"))
w = ["s_cmp_ge_u32 s2, 256", "s_cbranch_scc1 Lw_done", "s_load_dwordx2 s[4:5], s[0:1], 120", "s_waitcnt lgkmcnt(0)", "s_mov_b32 s8, s4", "s_mov_b32 s9, s5", "s_mov_b32 s10, 0x2000000", "s_mov_b32 s11, 0x20000",
     "v_lshlrev_b32 v1, 4, v0", "s_lshl_b32 s3, s2, 15", "v_add_u32 v1, s3, v1"]
for i in range(4):
    w.append("s_mov_b32 s12, %d" % (i * 8192))
    w.append("buffer_store_dwordx4 v[4:7], v1, s[8:11], s12 offen")
w.append("Lw_done:")
ks.append(("k3w_kernel", w, 32, "grid=(256,1,1) block=(512,1,1) lds=0"))
ks.append(("k4e_kernel", [], 32, "grid=(256,1,1) block=(256,1,1) lds=0"))
out = "".join("; @launch kernel=%s %s\n" % (k[0], k[3]) for k in ks)
out += '.amdgcn_target "amdgcn-amd-amdhsa--gfx950"\n.text\n'
ds = []
for k in ks:
    t, d = mk(k[0], k[1], k[2]); out += t; ds.append(d)
out += '.section .rodata,"a"\n' + "".join(".p2align 6\n" + d for d in ds)
open("empty.s", "w").write(out)
```
